```python
import torch

def _softmax(x, axis=-1):
    return torch.softmax(x, dim=axis)
def _gelu(x):
    return torch.nn.functional.gelu(x, approximate="tanh")
def _silu(x):
    return torch.nn.functional.silu(x)
def _sigmoid(x):
    return torch.sigmoid(x)
def _layernorm(x, axis=-1, eps=1e-5):
    m = x.mean(dim=axis, keepdim=True)
    v = x.var(dim=axis, keepdim=True, unbiased=False)
    return (x - m) / torch.sqrt(v + eps)
def _scatter_add(tgt, idx, src, axis=0):
    return tgt.clone().index_add_(axis, idx, src)
def _segment_sum(src, seg, n):
    out = torch.zeros((n,) + src.shape[1:], dtype=src.dtype)
    return out.index_add_(0, seg, src)
def _pad(x, pw):
    flat = tuple(v for pair in reversed(pw) for v in pair)
    return torch.nn.functional.pad(x, flat)

kernel_name = 'recurrent_scan__grouped_kv_mqa__dense_activation_squared_relu__prompt'

def setup_inputs():

    _w = (lambda a: (lambda t: t.to(torch.bfloat16) if t.is_floating_point() else t)(torch.as_tensor(a)))
    def _A_setup():
        B, S, D, H = 1, 2048, 512, 32
        Dh = D // H
        return {
            "x": _w((lambda *s: torch.randn(*s, dtype=torch.bfloat16) * 0.05)(B, S, D)),
            "wq": _w((lambda *s: torch.randn(*s, dtype=torch.bfloat16) * 0.05)(D, H * Dh)),
            "wk": _w((lambda *s: torch.randn(*s, dtype=torch.bfloat16) * 0.05)(D, Dh)),
            "wv": _w((lambda *s: torch.randn(*s, dtype=torch.bfloat16) * 0.05)(D, Dh)),
            "wo": _w((lambda *s: torch.randn(*s, dtype=torch.bfloat16) * 0.05)(H * Dh, D)),
        }
    _A_in = _A_setup()

    def _B_setup():
        B, S, D, F = 1, 2048, 512, 1792
        return {
            "x": _w((lambda *s: torch.randn(*s, dtype=torch.bfloat16) * 0.05)(B, S, D)),
            "w1": _w((lambda *s: torch.randn(*s, dtype=torch.bfloat16) * 0.05)(D, F)),
            "b1": _w((lambda *s: torch.randn(*s, dtype=torch.bfloat16) * 0.4)(F)),
            "w2": _w((lambda *s: torch.randn(*s, dtype=torch.bfloat16) * 0.05)(F, D)),
            "b2": _w((lambda *s: torch.randn(*s, dtype=torch.bfloat16) * 1.6)(D)),
        }
    _B_in = _B_setup()

    return {
        "A_x": _A_in["x"],
        "A_wq": _A_in["wq"],
        "A_wk": _A_in["wk"],
        "A_wv": _A_in["wv"],
        "A_wo": _A_in["wo"],
        "B_x": _B_in["x"],
        "B_w1": _B_in["w1"],
        "B_b1": _B_in["b1"],
        "B_w2": _B_in["w2"],
        "B_b2": _B_in["b2"],
    }

def reference(A_x, A_wq, A_wk, A_wv, A_wo, B_x, B_w1, B_b1, B_w2, B_b2):
    def _A_ref(x, wq, wk, wv, wo):
        B, S, D = x.shape
        H = 32
        Dh = D // H
        q = (lambda x, *d: x.permute(*d))((x @ wq).reshape(B, S, H, Dh), 0, 2, 1, 3)
        k = x @ wk
        v = x @ wv
        scores = torch.einsum("bhqd,bkd->bhqk", q, k) * (Dh ** -0.5)
        p = _softmax(scores, axis=-1)
        o = torch.einsum("bhqk,bkd->bhqd", p, v)
        return (lambda x, *d: x.permute(*d))(o, 0, 2, 1, 3).reshape(B, S, H * Dh) @ wo

    def _B_ref(x, w1, b1, w2, b2):
        h = torch.einsum("bsd,df->bsf", x, w1) + b1
        zero = torch.zeros_like(h)
        r = torch.where(h > zero, h, zero)
        h = r * r
        out = torch.einsum("bsf,fd->bsd", h, w2) + b2
        return out

    x = A_x
    xn = _layernorm(x, axis=-1)
    s = _A_ref(xn, A_wq, A_wk, A_wv, A_wo)
    g = _silu(_B_ref(xn, B_w1, B_b1, B_w2, B_b2))
    return x + s * g
```

```python
import sys
NAME = "recurrent_scan__grouped_kv_mqa__dense_activation_squared_relu__prompt"
KERN = NAME + "_kernel"

class Cfg:
    stamps = False
    mapmode = "R"
    mimic = 1
    force_fb = False
    spin = 200000
cfg = Cfg()

WS_EPOCH = 0
WS_FKV = 0x1000
WS_FH = 0x10000
WS_KV = 0x40000
WS_O = 0x100000
WS_H = 0x400000
WS_ST = 0xC00000
WS_SIZE = 0x1000000
H_RB = 112 * 2048
XP = 1040
L_XN = 0
L_RING = 64 * XP
L_Q = L_RING + 65536
L_WKV = L_Q + 8192
L_MISC = L_WKV + 16384
L_M = L_MISC + 256
LDS_SIZE = L_MISC + 256
OP_STRIDE = 2304

out = []
def e(s): out.append("    " + s)
def lab(s): out.append(s + ":")
def vr(a, n): return f"v[{a}:{a+n-1}]"
def sr(a, n): return f"s[{a}:{a+n-1}]"
def mf32(d, a, b, c): e(f"v_mfma_f32_32x32x16_bf16 {vr(d,16)}, {vr(a,4)}, {vr(b,4)}, " + (vr(c,16) if c is not None else "0"))
def mf16(d, a, b, c): e(f"v_mfma_f32_16x16x32_bf16 {vr(d,4)}, {vr(a,4)}, {vr(b,4)}, " + (vr(c,4) if c is not None else "0"))
def ex(r): e(f"v_exp_f32 v{r}, v{r}")
def cv(d, a, b=None): e(f"v_cvt_pk_bf16_f32 v{d}, v{a}, v{a+1 if b is None else b}")
def rd128(d, a, off): e(f"ds_read_b128 {vr(d,4)}, v{a} offset:{off}")
def rdtr(d, a, off): e(f"ds_read_b64_tr_b16 {vr(d,2)}, v{a} offset:{off}")
def nops(n):
    while n > 0:
        k = min(n, 16); e(f"s_nop {k-1}"); n -= k
def srd(d, p, n):
    e(f"s_mov_b32 s{d}, s{p}"); e(f"s_mov_b32 s{d+1}, s{p+1}"); e(f"s_mov_b32 s{d+2}, {n}"); e(f"s_mov_b32 s{d+3}, 0x20000")

sW, sRB, sCG, sTAG, sG = 3, 4, 5, 6, 7
SWS = 8
pX, pWQ, pWK, pWV, pWO, pW1, pB1 = 16, 18, 20, 22, 24, 28, 30
pW2, pB2, pOUT, pDBG, pWS = 32, 34, 36, 38, 40
SA, SB, SC = 44, 48, 52
t0, t1, t2, t3 = 12, 13, 14, 15
sOFF, sSTR, sM0, sIT, sHO, sSP = 56, 57, 58, 59, 60, 61
sVM = 62
sST = 64
nst = [0]
def stamp(i):
    if cfg.stamps:
        e(f"s_memrealtime s[{sST+2*i}:{sST+2*i+1}]")
def dump_stamps(n):
    if cfg.stamps:
        e("s_waitcnt vmcnt(0) lgkmcnt(0)")
        e(f"s_memrealtime s[{sST+2*n}:{sST+2*n+1}]")
        e("s_waitcnt lgkmcnt(0)")
        e(f"s_mul_i32 s{t0}, s2, 12"); e(f"s_add_u32 s{t0}, s{t0}, s{sW}"); e(f"s_lshl_b32 s{t0}, s{t0}, 6"); e(f"s_add_u32 s{t0}, s{t0}, {WS_ST}")
        e("v_mov_b32 v1, 0"); e("s_mov_b64 exec, 1")
        for i in range(n+1):
            e(f"v_mov_b32 v2, s{sST+2*i}"); e(f"buffer_store_dword v2, v1, {sr(SWS,4)}, s{t0} offen offset:{4*i}")
        e("s_waitcnt vmcnt(0)")

def poll(name, vaddr, vtmp, soff, sleep=1):
    e(f"s_mov_b32 s{sSP}, {cfg.spin}")
    lab(f"L_{name}")
    e(f"buffer_load_dword v{vtmp}, v{vaddr}, {sr(SWS,4)}, {soff} offen sc1")
    e("s_waitcnt vmcnt(0)")
    e(f"v_cmp_eq_u32 vcc, s{sTAG}, v{vtmp}")
    e("s_nop 1")
    e("s_cmp_eq_u64 vcc, -1")
    e(f"s_cbranch_scc1 L_{name}_ok")
    if sleep: e(f"s_sleep {sleep}")
    e(f"s_sub_u32 s{sSP}, s{sSP}, 1")
    e(f"s_cmp_lg_u32 s{sSP}, 0")
    e(f"s_cbranch_scc1 L_{name}")
    lab(f"L_{name}_ok")

def ldspoll(name, vaddr, vtmp, off, target):
    e(f"s_mov_b32 s{sSP}, {cfg.spin*4}")
    lab(f"L_{name}")
    e(f"ds_read_b32 v{vtmp}, v{vaddr} offset:{off}")
    e("s_waitcnt lgkmcnt(0)")
    e(f"v_readfirstlane_b32 s{t0}, v{vtmp}")
    e("s_nop 1")
    e(f"s_cmp_eq_u32 s{t0}, {target}")
    e(f"s_cbranch_scc1 L_{name}_ok")
    e("s_sleep 1")
    e(f"s_sub_u32 s{sSP}, s{sSP}, 1")
    e(f"s_cmp_lg_u32 s{sSP}, 0")
    e(f"s_cbranch_scc1 L_{name}")
    lab(f"L_{name}_ok")

def prologue():
    e("s_cmp_ge_u32 s2, 256")
    e("s_cbranch_scc1 L_exit")
    stamp(0)
    e("s_load_dwordx16 s[16:31], s[0:1], 0")
    e("s_load_dwordx8 s[32:39], s[0:1], 64")
    e("s_load_dwordx2 s[40:41], s[0:1], 96")
    e("v_lshrrev_b32 v1, 6, v0")
    e("v_and_b32 v0, 63, v0")
    e(f"v_readfirstlane_b32 s{sW}, v1")
    if cfg.mapmode == "R":
        e(f"s_and_b32 s{t0}, s2, 7"); e(f"s_lshl_b32 s{t0}, s{t0}, 2")
        e(f"s_bfe_u32 s{t1}, s2, 0x20003"); e(f"s_or_b32 s{sRB}, s{t0}, s{t1}")
        e(f"s_lshr_b32 s{sCG}, s2, 5")
    elif cfg.mapmode == "C":
        e(f"s_and_b32 s{sCG}, s2, 7"); e(f"s_lshr_b32 s{sRB}, s2, 3")
    elif cfg.mapmode == "M":
        e(f"s_and_b32 s{t0}, s2, 1"); e(f"s_lshl_b32 s{t0}, s{t0}, 2")
        e(f"s_bfe_u32 s{t1}, s2, 0x20003"); e(f"s_or_b32 s{sCG}, s{t0}, s{t1}")
        e(f"s_bfe_u32 s{t0}, s2, 0x20001"); e(f"s_lshl_b32 s{t0}, s{t0}, 3")
        e(f"s_lshr_b32 s{t1}, s2, 5"); e(f"s_or_b32 s{sRB}, s{t0}, s{t1}")
    e(f"s_cmp_ge_u32 s{sW}, 8")
    e("s_cbranch_scc1 L_G")

def a_role():
    X, U, WF = 4, 36, 100
    e("v_lshrrev_b32 v1, 3, v0"); e("v_and_b32 v2, 7, v0"); e("v_lshlrev_b32 v2, 4, v2")
    e(f"v_mul_u32_u24 v3, {XP}, v1"); e("v_add_u32 v3, v3, v2")
    e("v_lshl_add_u32 v2, v1, 10, v2")
    e("v_lshlrev_b32 v1, 4, v0")
    e(f"s_lshl_b32 s{t0}, s{sRB}, 16"); e(f"s_lshl_b32 s{t1}, s{sW}, 13"); e(f"s_add_u32 s{t0}, s{t0}, s{t1}")
    e("s_waitcnt lgkmcnt(0)")
    srd(SA, pX, 2048*1024)
    for i in range(8):
        e(f"buffer_load_dwordx4 {vr(X+4*i,4)}, v2, {sr(SA,4)}, s{t0} offen offset:{128*i}")
    e(f"s_load_dword s{sTAG}, s[{pWS}:{pWS+1}], {WS_EPOCH}")
    srd(SWS, pWS, WS_SIZE)
    e(f"s_cmp_lg_u32 s{sW}, 0")
    e("s_cbranch_scc1 L_A_nowkv")
    e(f"s_cmp_ge_u32 s{sCG}, 4")
    e(f"s_cselect_b32 s{SB}, s{pWV}, s{pWK}"); e(f"s_cselect_b32 s{SB+1}, s{pWV+1}, s{pWK+1}")
    e(f"s_mov_b32 s{SB+2}, 16384"); e(f"s_mov_b32 s{SB+3}, 0x20000")
    for i in range(4):
        e(f"s_mov_b32 m0, {L_WKV+4096*i}"); e(f"s_mov_b32 s{t1}, {4096*i}")
        for j in range(4):
            e(f"buffer_load_dwordx4 v1, {sr(SB,4)}, s{t1} offen offset:{1024*j} lds")
    e(f"v_mov_b32 v164, {L_MISC}"); e("v_mov_b32 v166, 0"); e("v_mov_b32 v167, 0")
    e("ds_write_b64 v164, v[166:167]"); e("ds_write_b64 v164, v[166:167] offset:8")
    lab("L_A_nowkv")
    e(f"s_and_b32 s{t1}, s{sW}, 1"); e(f"s_lshl_b32 s{t1}, s{t1}, 2"); e(f"s_lshr_b32 s{t2}, s{sW}, 1"); e(f"s_add_u32 s{t1}, s{t1}, s{t2}")
    e(f"s_lshl_b32 s{t2}, s{sCG}, 3"); e(f"s_add_u32 s{t1}, s{t1}, s{t2}"); e(f"s_lshl_b32 s{t1}, s{t1}, 10")
    e(f"s_lshl_b32 s{t2}, s{sRB}, 16"); e(f"s_add_u32 s{t1}, s{t1}, s{t2}"); e(f"s_add_u32 s{sHO}, s{t1}, {WS_O}")
    for i in range(4): e(f"v_mov_b32 v{164+i}, -1")
    e(f"buffer_store_dwordx4 v[164:167], v1, {sr(SWS,4)}, s{sHO} offen sc1")
    e(f"s_mul_i32 s{t1}, s{sW}, {8*XP}"); e(f"v_add_u32 v3, s{t1}, v3")
    e(f"s_cmp_lg_u32 s{sW}, 0")
    e("s_cbranch_scc1 L_A_w1")
    e("s_waitcnt vmcnt(17)")
    e("s_branch L_A_w2")
    lab("L_A_w1")
    e("s_waitcnt vmcnt(1)")
    lab("L_A_w2")
    stamp(1)
    SM, SQ = 164, 166
    for r in range(32):
        u = U + 2*r
        e(f"v_lshlrev_b32 v{u}, 16, v{X+r}"); e(f"v_and_b32 v{u+1}, 0xffff0000, v{X+r}")
        if r == 0:
            e(f"v_pk_mul_f32 {vr(SQ,2)}, {vr(u,2)}, {vr(u,2)}")
        else:
            e(f"v_pk_fma_f32 {vr(SQ,2)}, {vr(u,2)}, {vr(u,2)}, {vr(SQ,2)}")
        if r == 1: e(f"v_pk_add_f32 {vr(SM,2)}, {vr(u,2)}, {vr(u-2,2)}")
        elif r > 1: e(f"v_pk_add_f32 {vr(SM,2)}, {vr(u,2)}, {vr(SM,2)}")
    e(f"v_add_f32 v{SM}, v{SM}, v{SM+1}"); e(f"v_add_f32 v{SQ}, v{SQ}, v{SQ+1}")
    for dpp in ("quad_perm:[1,0,3,2]", "quad_perm:[2,3,0,1]", "row_half_mirror"):
        e("s_nop 0")
        e(f"v_add_f32_dpp v{SM}, v{SM}, v{SM} {dpp} row_mask:0xf bank_mask:0xf")
        e(f"v_add_f32_dpp v{SQ}, v{SQ}, v{SQ} {dpp} row_mask:0xf bank_mask:0xf")
    e(f"v_mul_f32 v{SM}, 0x3b000000, v{SM}")
    e(f"v_mul_f32 v{SM+1}, v{SM}, v{SM}")
    e(f"v_mul_f32 v{SQ}, 0x3b000000, v{SQ}")
    e(f"v_sub_f32 v{SQ}, v{SQ}, v{SM+1}")
    e(f"v_max_f32 v{SQ}, 0, v{SQ}")
    if cfg.mimic:
        e(f"v_cvt_pk_bf16_f32 v{SM+1}, v{SM}, v{SQ}")
        e(f"v_lshlrev_b32 v{SM}, 16, v{SM+1}"); e(f"v_and_b32 v{SQ}, 0xffff0000, v{SM+1}")
    e(f"v_add_f32 v{SQ}, 0x3727c5ac, v{SQ}")
    if cfg.mimic:
        e(f"v_cvt_pk_bf16_f32 v{SQ}, v{SQ}, v{SQ}"); e(f"v_lshlrev_b32 v{SQ}, 16, v{SQ}")
    e(f"v_sqrt_f32 v{SQ}, v{SQ}"); e("s_nop 0")
    if cfg.mimic:
        e(f"v_cvt_pk_bf16_f32 v{SQ}, v{SQ}, v{SQ}"); e(f"v_lshlrev_b32 v{SQ}, 16, v{SQ}")
    e(f"v_rcp_f32 v{SQ}, v{SQ}"); e("s_nop 0")
    e(f"v_mul_f32 v{SM}, v{SM}, v{SQ}")
    for r in range(32):
        u = U + 2*r
        e(f"v_pk_fma_f32 {vr(u,2)}, {vr(u,2)}, {vr(SQ,2)}, {vr(SM,2)} op_sel_hi:[1,0,0] neg_lo:[0,0,1] neg_hi:[0,0,1]")
        cv(X+r, u)
        if r % 4 == 3: e(f"ds_write_b128 v3, {vr(X+r-3,4)} offset:{128*(r//4)}")
    e("s_waitcnt vmcnt(0)")
    e(f"s_cmp_lg_u32 s{sW}, 0")
    e("s_cbranch_scc1 L_A_ln")
    e("v_lshrrev_b32 v2, 4, v0"); e("v_and_b32 v164, 15, v0")
    e("v_lshlrev_b32 v165, 3, v164"); e("v_lshl_add_u32 v165, v2, 12, v165"); e(f"v_add_u32 v165, {L_WKV}, v165")
    for s in range(16):
        for jh in range(2): rdtr(WF+4*s+2*jh, 165, 256*s+128*jh)
    e(f"s_and_b32 s{t1}, s{sCG}, 3"); e(f"s_mul_i32 s{t1}, s{t1}, {16*XP}")
    e(f"v_mul_u32_u24 v165, {XP}, v164"); e("v_lshl_add_u32 v165, v2, 8, v165"); e(f"v_add_u32 v165, s{t1}, v165")
    lab("L_A_ln")
    e("s_waitcnt lgkmcnt(0)")
    e(f"s_add_u32 s{sTAG}, s{sTAG}, 0x9e3779b1")
    stamp(2)
    e("s_barrier")
    e(f"s_cmp_lg_u32 s{sW}, 0")
    e("s_cbranch_scc1 L_A_nokv")
    e("s_setprio 3")
    for s in range(16): rd128(U+4*s, 165, 16*s)
    e("v_and_b32 v166, 1, v2"); e("v_lshrrev_b32 v167, 1, v2"); e("v_lshlrev_b32 v167, 3, v167"); e("v_lshl_add_u32 v167, v164, 4, v167")
    e(f"s_bfe_u32 s{t1}, s{sCG}, 0x10001"); e(f"s_lshl_b32 s{t2}, s{sRB}, 1"); e(f"s_add_u32 s{t1}, s{t1}, s{t2}"); e(f"s_lshl_b32 s{t1}, s{t1}, 11")
    e(f"s_add_u32 s{t1}, s{t1}, {WS_KV}"); e(f"s_and_b32 s{t2}, s{sCG}, 1")
    e(f"s_cmp_ge_u32 s{sCG}, 4")
    e("s_cbranch_scc1 L_A_v")
    for s in range(16):
        e(f"s_waitcnt lgkmcnt({15-s})"); mf16(X+4*(s&1), WF+4*s, U+4*s, X+4*(s&1) if s > 1 else None)
    e("v_lshl_add_u32 v167, v166, 9, v167"); e(f"s_lshl_b32 s{t2}, s{t2}, 8")
    e("s_branch L_A_kvst")
    lab("L_A_v")
    for s in range(16):
        e(f"s_waitcnt lgkmcnt({15-s})"); mf16(X+4*(s&1), U+4*s, WF+4*s, X+4*(s&1) if s > 1 else None)
    e("v_lshl_add_u32 v167, v166, 8, v167"); e(f"s_lshl_b32 s{t2}, s{t2}, 9"); e(f"s_add_u32 s{t2}, s{t2}, 1024")
    lab("L_A_kvst")
    e(f"s_add_u32 s{t1}, s{t1}, s{t2}")
    nops(6)
    e(f"v_pk_add_f32 {vr(X,2)}, {vr(X,2)}, {vr(X+4,2)}"); e(f"v_pk_add_f32 {vr(X+2,2)}, {vr(X+2,2)}, {vr(X+6,2)}")
    cv(X, X); cv(X+1, X+2)
    e(f"buffer_store_dwordx2 {vr(X,2)}, v167, {sr(SWS,4)}, s{t1} offen sc1")
    e(f"s_lshl_b32 s{t1}, s{sRB}, 3"); e(f"s_add_u32 s{t1}, s{t1}, s{sCG}"); e(f"s_lshl_b32 s{t1}, s{t1}, 7"); e(f"s_add_u32 s{t1}, s{t1}, {WS_FKV}")
    e(f"v_mov_b32 v166, s{sTAG}"); e("v_mov_b32 v167, 0")
    e("s_waitcnt vmcnt(0)")
    e("s_mov_b64 exec, 1")
    e(f"buffer_store_dword v166, v167, {sr(SWS,4)}, s{t1} offen sc1")
    e("s_mov_b64 exec, -1")
    e("s_setprio 0")
    lab("L_A_nokv")
    stamp(3)
    Q, KV, S, P, O = 4, 20, 44, 76, 84
    T = 148
    e(f"v_and_b32 v{T}, 15, v0"); e(f"v_lshrrev_b32 v{T+1}, 5, v0"); e(f"v_lshl_add_u32 v2, v{T+1}, 4, v{T}"); e("v_lshlrev_b32 v2, 4, v2")
    e(f"s_mov_b32 s{sVM}, 0xffff"); e(f"s_mov_b32 s{sVM+1}, 0xffff")
    e(f"v_and_b32 v{T}, 27, v0"); e(f"v_cmp_eq_u32 vcc, 16, v{T}"); e(f"v_mov_b32 v{T+1}, 0x3f803f80"); e(f"v_mov_b32 v{T}, 0")
    e(f"v_cndmask_b32 v{T}, v{T}, v{T+1}, vcc")
    for b in range(2):
        for r in range(8): e(f"v_mov_b32 v{KV+12*b+4+r}, v{T}")
    for r in range(64): e(f"v_mov_b32 v{O+r}, 0")
    for r in (P+4, P+5, P+6, S+30, S+31): e(f"v_mov_b32 v{r}, 0")
    e(f"s_lshr_b32 s{t2}, s{sW}, 1")
    e(f"v_lshlrev_b32 v{T}, 7, v0")
    e(f"s_lshl_b32 s{t1}, s{t2}, 13"); e(f"s_add_u32 s{t1}, s{t1}, {WS_FKV}")
    e(f"s_lshl_b32 s{sOFF}, s{t2}, 15"); e(f"s_add_u32 s{sOFF}, s{sOFF}, {WS_KV}")
    poll("pkv", T, T+1, f"s{t1}")
    stamp(4)
    def ldK(b): e(f"buffer_load_dwordx4 {vr(KV+12*b,4)}, v1, {sr(SWS,4)}, s{sOFF} offen sc1")
    def ldV(b):
        e(f"s_mov_b64 exec, {sr(sVM,2)}")
        e(f"buffer_load_dwordx4 {vr(KV+12*b+4,4)}, v2, {sr(SWS,4)}, s{sOFF} offen offset:1024 sc1")
        e(f"buffer_load_dwordx4 {vr(KV+12*b+8,4)}, v2, {sr(SWS,4)}, s{sOFF} offen offset:1536 sc1")
        e("s_mov_b64 exec, -1")
        e(f"s_add_u32 s{sOFF}, s{sOFF}, 2048")
    ldK(0); ldV(0)
    e(f"v_mov_b32 v{T+2}, {L_MISC}")
    ldspoll("pq", T+2, T+1, 0, 1)
    stamp(5)
    def loadQ():
        e(f"s_and_b32 s{t1}, s{sW}, 1"); e(f"s_lshl_b32 s{t1}, s{t1}, 12"); e(f"s_add_u32 s{t1}, s{t1}, {L_Q}")
        for u in range(4):
            e(f"s_lshr_b32 s{t2}, s{sW}, 1"); e(f"s_add_u32 s{t2}, s{t2}, {u}"); e(f"s_and_b32 s{t2}, s{t2}, 3"); e(f"s_lshl_b32 s{t2}, s{t2}, 10"); e(f"s_add_u32 s{t2}, s{t2}, s{t1}")
            e(f"v_add_u32 v{T}, s{t2}, v1"); rd128(Q+4*u, T, 0)
    loadQ()
    e("s_waitcnt vmcnt(0) lgkmcnt(0)")
    e("s_setprio 2")
    mf32(S, KV, Q, None)
    e(f"s_mov_b32 s{sIT}, 8")
    nops(10)
    stamp(6)
    out.append(".p2align 6")
    lab("L_att")
    for i in range(8):
        kt, q = divmod(i, 4); kn, qn = divmod(i+1, 4); kp, qp = divmod(i-1, 4)
        Sc = S + 16*(i&1); Sn = S + 16*((i+1)&1)
        bK = KV + 12*(kn&1); bV = KV + 12*(kt&1) + 4; bVp = KV + 12*(kp&1) + 8
        ex(Sc); cv(P+7, Sn+14); mf32(Sn, bK, Q+4*qn, None)
        if q == 0: ldK((kt+1)&1)
        if i == 7:
            e(f"s_sub_u32 s{sIT}, s{sIT}, 1")
        ex(Sc+1); ex(Sc+2); cv(P, Sc); ex(Sc+3); ex(Sc+4); cv(P+1, Sc+2)
        mf32(O+16*qp, bVp, P+4, O+16*qp)
        if q == 0: ldV((kt+1)&1)
        if i == 7:
            e(f"s_cmp_eq_u32 s{sIT}, 1"); e("s_cbranch_scc0 L_att_np"); e("s_setprio 1"); lab("L_att_np")
        ex(Sc+5); ex(Sc+6); cv(P+2, Sc+4); ex(Sc+7); ex(Sc+8); cv(P+3, Sc+6); ex(Sc+9); ex(Sc+10)
        mf32(O+16*q, bV, P, O+16*q)
        if q == 2: e("s_waitcnt vmcnt(0)")
        if i == 7: e(f"s_cmp_lg_u32 s{sIT}, 0")
        cv(P+4, Sc+8); ex(Sc+11); ex(Sc+12); cv(P+5, Sc+10); ex(Sc+13); ex(Sc+14); cv(P+6, Sc+12); ex(Sc+15)
    e("s_cbranch_scc1 L_att")
    cv(P+7, S+16+14)
    e("s_setprio 2"); e("s_nop 0")
    mf32(O+48, KV+12+8, P+4, O+48)
    stamp(7)
    lab("L_att_done")
    ldspoll("pg", T+2, T+1, 4, 4)
    def dump_partials():
        e(f"v_lshlrev_b32 v{T+3}, 2, v0")
        for u in range(1, 4):
            e(f"s_add_u32 s{t1}, s{sW}, {2*u}"); e(f"s_and_b32 s{t1}, s{t1}, 7"); e(f"s_mul_i32 s{t1}, s{t1}, {3*OP_STRIDE}"); e(f"s_add_u32 s{t1}, s{t1}, {L_RING+(u-1)*OP_STRIDE}")
            e(f"v_add_u32 v{T}, s{t1}, v1"); e(f"v_add_u32 v{T+1}, s{t1}, v{T+3}")
            e(f"ds_write_b128 v{T}, {vr(O+16*u,4)}"); e(f"ds_write_b128 v{T}, {vr(O+16*u+4,4)} offset:1024"); e(f"ds_write_b32 v{T+1}, v{O+16*u+8} offset:2048")
    nops(4)
    dump_partials()
    e(f"v_min3_f32 v{T+4}, v{O+8}, v{O+24}, v{O+40}"); e(f"v_min_f32 v{T+4}, v{T+4}, v{O+56}")
    e(f"v_add_f32 v{T+5}, v{O+8}, v{O+24}"); e(f"v_add_f32 v{T+6}, v{O+40}, v{O+56}"); e(f"v_add_f32 v{T+5}, v{T+5}, v{T+6}")
    e(f"v_cmp_le_f32 vcc, 0x21800000, v{T+4}"); e("s_nop 1"); e(f"s_mov_b64 {sr(t2,2)}, vcc")
    e(f"v_cmp_ge_f32 vcc, 0x5d800000, v{T+5}"); e("s_nop 1"); e(f"s_and_b64 vcc, vcc, {sr(t2,2)}")
    e("s_cmp_eq_u64 vcc, -1")
    if not cfg.force_fb: e("s_cbranch_scc1 L_A_safe")
    e(f"v_mov_b32 v{T+4}, 1"); e(f"ds_write_b32 v{T+2}, v{T+4} offset:8")
    lab("L_A_safe")
    e(f"s_mul_i32 s{t1}, s{sW}, {3*OP_STRIDE}"); e(f"s_add_u32 s{t1}, s{t1}, {L_RING}")
    e(f"v_add_u32 v{T}, s{t1}, v1"); e(f"v_add_u32 v{T+1}, s{t1}, v{T+3}")
    e("s_waitcnt lgkmcnt(0)")
    stamp(8)
    e("s_barrier")
    e(f"ds_read_b32 v{T+4}, v{T+2} offset:8")
    lab("L_A_fin")
    R = O + 16
    for u in range(3):
        rd128(R+16*u, T, u*OP_STRIDE); rd128(R+16*u+4, T, u*OP_STRIDE+1024); e(f"ds_read_b32 v{R+16*u+8}, v{T+1} offset:{u*OP_STRIDE+2048}")
    e("s_waitcnt lgkmcnt(9)")
    e(f"v_readfirstlane_b32 s{t0}, v{T+4}"); e("s_nop 1")
    e(f"s_cmp_lg_u32 s{t0}, 0"); e("s_cbranch_scc1 L_A_fb")
    for u in range(3):
        e(f"s_waitcnt lgkmcnt({6-3*u})")
        if u == 2: e("s_barrier")
        e(f"v_add_f32 v{O+8}, v{O+8}, v{R+16*u+8}")
        for r in range(0, 8, 2): e(f"v_pk_add_f32 {vr(O+r,2)}, {vr(O+r,2)}, {vr(R+16*u+r,2)}")
    e(f"v_rcp_f32 v{O+8}, v{O+8}"); e("s_nop 0")
    for r in range(0, 8, 2):
        e(f"v_pk_mul_f32 {vr(O+r,2)}, {vr(O+r,2)}, {vr(O+8,2)} op_sel_hi:[1,0]")
    for r in range(4): cv(P+r, O+2*r)
    e(f"buffer_store_dwordx4 {vr(P,4)}, v1, {sr(SWS,4)}, s{sHO} offen sc1")
    stamp(9)
    e("s_barrier")
    e(f"s_or_b32 s{t0}, s2, s{sW}"); e(f"s_cmp_lg_u32 s{t0}, 0"); e("s_cbranch_scc1 L_A_end")
    e(f"v_mov_b32 v{T}, s{sTAG}"); e(f"v_mov_b32 v{T+1}, 0"); e("s_mov_b64 exec, 1")
    e(f"buffer_store_dword v{T}, v{T+1}, {sr(SWS,4)}, 0 offen")
    lab("L_A_end")
    dump_stamps(10)
    e("s_endpgm")
    lab("L_A_fb")
    e("s_waitcnt lgkmcnt(0)")
    M = T + 8
    for u in range(4): e(f"v_mov_b32 v{M+u}, 0xff800000")
    e(f"s_lshr_b32 s{t2}, s{sW}, 1"); e(f"s_lshl_b32 s{t3}, s{t2}, 15"); e(f"s_add_u32 s{t3}, s{t3}, {WS_KV}"); e(f"s_mov_b32 s{sOFF}, s{t3}")
    e(f"s_mov_b32 s{sIT}, 16")
    lab("L_fb1")
    ldK(0); e(f"s_add_u32 s{sOFF}, s{sOFF}, 2048"); e("s_waitcnt vmcnt(0)")
    for u in range(4):
        mf32(S, KV, Q+4*u, None); nops(16)
        for r in range(0, 16, 2): e(f"v_max3_f32 v{M+u}, v{M+u}, v{S+r}, v{S+r+1}")
    e(f"s_sub_u32 s{sIT}, s{sIT}, 1"); e(f"s_cmp_lg_u32 s{sIT}, 0"); e("s_cbranch_scc1 L_fb1")
    def maddr(u, reg, lanereg):
        e(f"s_lshr_b32 s{t2}, s{sW}, 1"); e(f"s_add_u32 s{t1}, s{t2}, {u}"); e(f"s_and_b32 s{t1}, s{t1}, 3")
        e(f"s_and_b32 s{t0}, s{sW}, 1"); e(f"s_lshl_b32 s{t0}, s{t0}, 2"); e(f"s_add_u32 s{t1}, s{t1}, s{t0}"); e(f"s_lshl_b32 s{t1}, s{t1}, 10"); e(f"s_add_u32 s{t1}, s{t1}, {L_WKV}")
        e(f"v_add_u32 v{reg}, s{t1}, v{lanereg}")
    e(f"s_lshr_b32 s{t2}, s{sW}, 1"); e(f"s_lshl_b32 s{t2}, s{t2}, 8"); e(f"v_add_u32 v{T+5}, s{t2}, v{T+3}")
    for u in range(4):
        maddr(u, T+6, T+5); e(f"ds_write_b32 v{T+6}, v{M+u}")
    e("s_waitcnt lgkmcnt(0)")
    e("s_barrier")
    e(f"v_and_b32 v{T+5}, 0x7c, v{T+3}")
    for u in range(4):
        maddr(u, T+6, T+5)
        for k in range(8): e(f"ds_read_b32 v{S+k}, v{T+6} offset:{128*k}")
        e("s_waitcnt lgkmcnt(0)")
        for k in range(0, 8, 2): e(f"v_max3_f32 v{M+u}, v{M+u}, v{S+k}, v{S+k+1}")
    for r in range(64): e(f"v_mov_b32 v{O+r}, 0")
    e(f"s_mov_b32 s{sOFF}, s{t3}"); e(f"s_mov_b32 s{sIT}, 16")
    lab("L_fb2")
    ldK(0); ldV(0); e("s_waitcnt vmcnt(0)")
    for u in range(4):
        mf32(S, KV, Q+4*u, None); nops(16)
        for r in range(16): e(f"v_sub_f32 v{S+r}, v{S+r}, v{M+u}")
        for r in range(16): ex(S+r)
        e("s_nop 0")
        for r in range(8): cv(P+r, S+2*r)
        e("s_nop 1")
        mf32(O+16*u, KV+4, P, O+16*u); mf32(O+16*u, KV+8, P+4, O+16*u)
    e(f"s_sub_u32 s{sIT}, s{sIT}, 1"); e(f"s_cmp_lg_u32 s{sIT}, 0"); e("s_cbranch_scc1 L_fb2")
    nops(16)
    dump_partials()
    e(f"s_mul_i32 s{t1}, s{sW}, {3*OP_STRIDE}"); e(f"s_add_u32 s{t1}, s{t1}, {L_RING}")
    e(f"v_add_u32 v{T}, s{t1}, v1"); e(f"v_add_u32 v{T+1}, s{t1}, v{T+3}"); e(f"v_mov_b32 v{T+4}, 0")
    e("s_waitcnt lgkmcnt(0)")
    e("s_barrier")
    e("s_branch L_A_fin")

def g_role():
    ACC, H, A = 4, 68, 132
    vD0, vD1, vT0, vT1, vXN, vL16, vN0, vN1, T = 148, 149, 150, 151, 152, 153, 154, 155, 156
    lab("L_G")
    e(f"s_sub_u32 s{sG}, s{sW}, 8")
    e(f"s_getpc_b64 {sr(SC,2)}"); lab("L_pc")
    e(f"s_sub_u32 s{SC}, s{SC}, L_pc-{KERN}"); e(f"s_subb_u32 s{SC+1}, s{SC+1}, 0")
    e(f"s_mov_b32 s{SC+2}, L_codeend-{KERN}"); e(f"s_mov_b32 s{SC+3}, 0x20000")
    e(f"v_lshlrev_b32 v{T}, 7, v0"); e(f"s_lshl_b32 s{t0}, s{sG}, 13")
    e(f"buffer_load_dword v{T+1}, v{T}, {sr(SC,4)}, s{t0} offen")
    e(f"v_lshlrev_b32 v{vL16}, 4, v0")
    e("v_lshrrev_b32 v1, 3, v0")
    e("v_bfe_u32 v2, v0, 4, 1"); e("v_lshlrev_b32 v2, 2, v2"); e("v_and_b32 v3, 7, v0"); e("v_xor_b32 v2, v2, v3"); e("v_lshlrev_b32 v2, 4, v2")
    e(f"s_lshl_b32 s{sM0}, s{sG}, 14"); e(f"s_add_u32 s{sM0}, s{sM0}, {L_RING}")
    e(f"v_bfe_u32 v{T}, v0, 2, 2"); e(f"v_lshrrev_b32 v{T+2}, 5, v0"); e(f"v_lshl_add_u32 v{T}, v{T+2}, 2, v{T}")
    e(f"v_and_b32 v{T+2}, 3, v0"); e(f"v_lshlrev_b32 v{T+2}, 3, v{T+2}"); e(f"v_bfe_u32 v{T+3}, v0, 4, 1"); e(f"v_lshl_add_u32 v{T+2}, v{T+3}, 5, v{T+2}")
    e(f"v_lshl_add_u32 v{T+4}, v{T}, 6, v{T+2}"); e(f"v_add_u32 v{T+4}, s{sM0}, v{T+4}")
    e(f"v_lshl_add_u32 v{vT0}, v{T}, 7, v{T+2}"); e(f"v_bfe_u32 v{T+3}, v0, 3, 1"); e(f"v_lshl_add_u32 v{vT0}, v{T+3}, 6, v{vT0}")
    e(f"v_xor_b32 v{vT1}, 64, v{vT0}"); e(f"v_add_u32 v{vT0}, s{sM0}, v{vT0}"); e(f"v_add_u32 v{vT1}, s{sM0}, v{vT1}")
    e(f"v_and_b32 v{T}, 31, v0"); e(f"v_mul_u32_u24 v{vXN}, {XP}, v{T}"); e(f"v_lshrrev_b32 v{T+2}, 5, v0"); e(f"v_lshl_add_u32 v{vXN}, v{T+2}, 4, v{vXN}")
    e(f"v_lshlrev_b32 v{T+5}, 1, v{T}"); e(f"v_lshl_add_u32 v{T+5}, v{T+2}, 20, v{T+5}")
    e("s_waitcnt lgkmcnt(0)")
    e(f"s_load_dword s{sTAG}, s[{pWS}:{pWS+1}], {WS_EPOCH}")
    srd(SWS, pWS, WS_SIZE)
    e(f"s_cmp_eq_u32 s{sG}, 3")
    e(f"s_cselect_b32 s{SA}, s{pWQ}, s{pW1}"); e(f"s_cselect_b32 s{SA+1}, s{pWQ+1}, s{pW1+1}")
    e(f"s_mov_b32 s{SA+3}, 0x20000")
    e(f"s_cselect_b32 s{t1}, 2, 7")
    e(f"s_cselect_b32 s{SB+2}, 0, 3584")
    e(f"s_cselect_b32 s{t2}, 1, 3"); e(f"s_cselect_b32 s{t3}, 0, s{sG}")
    e(f"s_lshl_b32 s{t1}, s{t1}, 9"); e(f"s_lshl_b32 s{SA+2}, s{t1}, 9")
    e(f"s_mul_i32 s{t2}, s{t2}, s{sCG}"); e(f"s_add_u32 s{t2}, s{t2}, s{t3}"); e(f"s_lshl_b32 s{sOFF}, s{t2}, 7")
    e(f"v_and_b32 v{T}, 4, v1"); e(f"v_add_u32 v{T}, v{T}, v1")
    e(f"v_mad_u32_u24 v{vD0}, v{T}, s{t1}, v2")
    e(f"s_lshl_b32 s{sSTR}, s{t1}, 4"); e(f"s_lshl_b32 s{t3}, s{t1}, 2"); e(f"s_sub_u32 s{t3}, s{t3}, 1024"); e(f"v_add_u32 v{vD1}, s{t3}, v{vD0}")
    e(f"s_mov_b32 s{SB}, s{pB1}"); e(f"s_mov_b32 s{SB+1}, s{pB1+1}"); e(f"s_mov_b32 s{SB+3}, 0x20000")
    BI = H + 32
    e(f"buffer_load_ushort v{BI}, v{T+5}, {sr(SB,4)}, s{sOFF} offen"); e(f"buffer_load_ushort v{BI+4}, v{T+5}, {sr(SB,4)}, s{sOFF} offen offset:64")
    e(f"s_lshl_b32 s{sHO}, s{t2}, 13")
    def dma(slot, first=True, second=True):
        if first:
            e(f"s_add_u32 m0, s{sM0}, {2048*slot}"); e("s_nop 0")
            e(f"buffer_load_dwordx4 v{vD0}, {sr(SA,4)}, s{sOFF} offen lds")
        if second:
            e(f"buffer_load_dwordx4 v{vD1}, {sr(SA,4)}, s{sOFF} offen offset:1024 lds")
            e(f"s_add_u32 s{sOFF}, s{sOFF}, s{sSTR}")
    for s in range(8): dma(s)
    def zero_bias_pad():
        for r in (1, 2, 3, 5, 6, 7, 9, 10, 11): e(f"v_mov_b32 v{BI+r}, 0")
        e(f"v_mov_b32 v{BI+8}, 0x3f80")
    zero_bias_pad()
    e(f"v_lshl_add_u32 v{vN0}, v1, 10, v2"); e(f"v_add_u32 v{vN1}, {8*1024-1024}, v{vN0}")
    e("s_waitcnt vmcnt(14)")
    for t in range(4): mf32(ACC+16*t, BI+4*(t&1), BI+8, None)
    def rdA(s, buf):
        for ct in range(2):
            for jh in range(2): rdtr(A+8*buf+4*ct+2*jh, vT0+ct, 2048*(s%8)+1024*jh)
    def rdB(s, buf):
        for rh in range(2): rd128(H+8*buf+4*rh, vXN, 32*s+32*XP*rh)
    rdA(0, 0)
    e("s_waitcnt lgkmcnt(0)")
    e(f"s_add_u32 s{sTAG}, s{sTAG}, 0x9e3779b1")
    stamp(1)
    e("s_barrier")
    stamp(2)
    rdB(0, 0)
    def set_w2():
        srd(SA, pW2, 1792*1024)
        e(f"s_lshl_b32 s{sOFF}, s{sG}, 19"); e(f"s_lshl_b32 s{t0}, s{sCG}, 7"); e(f"s_add_u32 s{sOFF}, s{sOFF}, s{t0}"); e(f"s_mov_b32 s{sSTR}, 16384")
        e(f"v_mov_b32 v{vD0}, v{vN0}"); e(f"v_mov_b32 v{vD1}, v{vN1}")
    e(f"s_mov_b32 s{sIT}, 4")
    e("s_setprio 3")
    lab("L_g1")
    e(f"s_cmp_lg_u32 s{sIT}, 1"); e("s_cbranch_scc1 L_g1_go")
    e(f"s_cmp_eq_u32 s{sG}, 3"); e("s_cbranch_scc1 L_g1_x")
    set_w2()
    e("s_branch L_g1_go")
    lab("L_g1_x")
    srd(SA, pW1, 512*3584)
    e(f"s_lshl_b32 s{sOFF}, s{sCG}, 6"); e(f"s_add_u32 s{sOFF}, s{sOFF}, {24*128}"); e(f"s_mov_b32 s{sSTR}, {32*3584}")
    e(f"v_bfe_u32 v{T}, v0, 2, 2"); e(f"v_bfe_u32 v{T+2}, v0, 4, 1"); e(f"v_lshl_add_u32 v{T}, v{T+2}, 3, v{T}"); e(f"v_lshrrev_b32 v{T+2}, 5, v0"); e(f"v_lshl_add_u32 v{T}, v{T+2}, 2, v{T}")
    e(f"v_and_b32 v{T+2}, 3, v0"); e(f"v_mul_u32_u24 v{T}, 3584, v{T}"); e(f"v_lshl_add_u32 v{vD0}, v{T+2}, 4, v{T}")
    e(f"v_add_u32 v{vD1}, {16*3584-1024}, v{vD0}")
    lab("L_g1_go")
    for s in range(8):
        b = s & 1; n = b ^ 1
        e("s_waitcnt lgkmcnt(0)")
        mf32(ACC, A+8*b, H+8*b, ACC)
        e("s_waitcnt vmcnt(12)")
        rdA(s+1, n)
        mf32(ACC+16, A+8*b+4, H+8*b, ACC+16)
        rdB(s+1, n)
        mf32(ACC+32, A+8*b, H+8*b+4, ACC+32)
        dma(s, True, False)
        mf32(ACC+48, A+8*b+4, H+8*b+4, ACC+48)
        dma(s, False, True)
    e(f"v_add_u32 v{vXN}, 256, v{vXN}")
    e(f"s_sub_u32 s{sIT}, s{sIT}, 1"); e(f"s_cmp_lg_u32 s{sIT}, 0"); e("s_cbranch_scc1 L_g1")
    stamp(3)
    e(f"v_subrev_u32 v{vXN}, 1024, v{vXN}")
    e(f"s_mul_i32 s{t3}, s{sRB}, {H_RB}"); e(f"s_add_u32 s{t3}, s{t3}, {WS_H}")
    e(f"s_cmp_eq_u32 s{sG}, 3"); e("s_cbranch_scc1 L_g_q")
    def h_epi(tiles):
        k = 0
        for acc, off in tiles:
            for half in range(2):
                d = H + 4*(k % 8); k += 1
                for r in range(0, 8, 2):
                    a = acc + 8*half + r
                    e(f"v_max_f32 v{a}, 0, v{a}"); e(f"v_max_f32 v{a+1}, 0, v{a+1}")
                    e(f"v_pk_mul_f32 {vr(a,2)}, {vr(a,2)}, {vr(a,2)}"); cv(d+r//2, a)
                o = off + 2048*half
                if o >= 4096:
                    e(f"buffer_store_dwordx4 {vr(d,4)}, v{vL16}, {sr(SWS,4)}, s{t1} offen offset:{o-4096} sc1")
                else:
                    e(f"buffer_store_dwordx4 {vr(d,4)}, v{vL16}, {sr(SWS,4)}, s{sHO} offen offset:{o} sc1")
    e("s_waitcnt lgkmcnt(0)")
    e(f"s_add_u32 s{sHO}, s{sHO}, s{t3}"); e(f"s_add_u32 s{t1}, s{sHO}, 4096")
    nops(4)
    h_epi([(ACC, 0), (ACC+16, 4096), (ACC+32, 1024), (ACC+48, 4096+1024)])
    e("s_branch L_g_pub")
    lab("L_g_q")
    e(f"s_mov_b32 s{SB+2}, 3584"); e(f"s_lshl_b32 s{t1}, s{sCG}, 6"); e(f"s_add_u32 s{t1}, s{t1}, {24*128}")
    e(f"buffer_load_ushort v{BI}, v{T+5}, {sr(SB,4)}, s{t1} offen")
    e(f"s_mov_b32 s{t1}, 0x3eb8aa3b")
    e(f"v_add_u32 v{T}, {L_Q}, v{vL16}"); e(f"v_mov_b32 v{T+2}, {L_MISC}"); e(f"v_mov_b32 v{T+3}, 1")
    e("s_waitcnt lgkmcnt(0)")
    nops(2)
    k = 0
    for t in range(4):
        ct, rh = t & 1, t >> 1
        for half in range(2):
            d = H + 4*(k % 8); k += 1
            for r in range(0, 8, 2):
                a = ACC + 16*t + 8*half + r
                e(f"v_mul_f32 v{a}, s{t1}, v{a}"); e(f"v_mul_f32 v{a+1}, s{t1}, v{a+1}"); cv(d+r//2, a)
            e(f"ds_write_b128 v{T}, {vr(d,4)} offset:{1024*((2*ct+half)*2+rh)}")
    e("s_waitcnt lgkmcnt(0)")
    e(f"ds_write_b32 v{T+2}, v{T+3}")
    stamp(4)
    def rdAx(s, buf):
        for ks in range(2):
            for jh in range(2): rdtr(A+8*buf+4*ks+2*jh, T+4, 2048*(s%8)+1024*ks+512*jh)
    def rdBx(s, buf):
        for ks in range(2):
            for rh in range(2): rd128(H+16*buf+8*ks+4*rh, vXN, 64*s+32*ks+32*XP*rh)
    e("s_waitcnt vmcnt(0)")
    for t in range(2): mf32(ACC+16*t, BI, BI+8, None)
    rdAx(0, 0); rdBx(0, 0)
    e(f"s_mov_b32 s{sIT}, 2")
    lab("L_gx")
    e(f"s_cmp_lg_u32 s{sIT}, 1"); e("s_cbranch_scc1 L_gx_go")
    set_w2()
    lab("L_gx_go")
    e("s_setprio 0")
    for s in range(8):
        b = s & 1; n = b ^ 1
        e("s_waitcnt lgkmcnt(0)")
        mf32(ACC, A+8*b, H+16*b, ACC)
        e("s_waitcnt vmcnt(12)")
        rdAx(s+1, n)
        mf32(ACC+16, A+8*b, H+16*b+4, ACC+16)
        rdBx(s+1, n)
        mf32(ACC, A+8*b+4, H+16*b+8, ACC)
        dma(s, True, False)
        mf32(ACC+16, A+8*b+4, H+16*b+12, ACC+16)
        dma(s, False, True)
    e("s_setprio 3")
    e(f"v_add_u32 v{vXN}, 512, v{vXN}")
    e(f"s_sub_u32 s{sIT}, s{sIT}, 1"); e(f"s_cmp_lg_u32 s{sIT}, 0"); e("s_cbranch_scc1 L_gx")
    e(f"s_lshl_b32 s{sHO}, s{sCG}, 12"); e(f"s_add_u32 s{sHO}, s{sHO}, {96*2048}"); e(f"s_add_u32 s{sHO}, s{sHO}, s{t3}")
    e("s_waitcnt lgkmcnt(0)")
    nops(8)
    h_epi([(ACC, 0), (ACC+16, 1024)])
    lab("L_g_pub")
    e(f"s_mov_b32 s{SB}, s{pB2}"); e(f"s_mov_b32 s{SB+1}, s{pB2+1}")
    e(f"s_cmp_eq_u32 s{sG}, 3"); e(f"s_cselect_b32 s{SB+2}, 1024, 0"); e(f"s_cselect_b32 s{sIT}, 2, 4")
    e(f"s_lshl_b32 s{t1}, s{sCG}, 7")
    e(f"buffer_load_ushort v{BI}, v{T+5}, {sr(SB,4)}, s{t1} offen"); e(f"buffer_load_ushort v{BI+4}, v{T+5}, {sr(SB,4)}, s{t1} offen offset:64")
    e(f"s_lshl_b32 s{t1}, s{sRB}, 3"); e(f"s_add_u32 s{t1}, s{t1}, s{sCG}")
    e(f"s_lshl_b32 s{t2}, s{t1}, 2"); e(f"s_add_u32 s{t2}, s{t2}, s{sG}"); e(f"s_lshl_b32 s{t2}, s{t2}, 7"); e(f"s_add_u32 s{t2}, s{t2}, {WS_FH}")
    e(f"v_mov_b32 v{T}, s{sTAG}"); e(f"v_mov_b32 v{T+2}, 0")
    e("s_waitcnt vmcnt(0)")
    e("s_mov_b64 exec, 1")
    e(f"buffer_store_dword v{T}, v{T+2}, {sr(SWS,4)}, s{t2} offen sc1")
    e("s_mov_b64 exec, -1")
    stamp(5)
    for t in range(4): mf32(ACC+16*t, BI+4*(t&1), BI+8, None)
    e(f"s_lshl_b32 s{t2}, s{sRB}, 12"); e(f"s_add_u32 s{t2}, s{t2}, {WS_FH}"); e(f"s_lshl_b32 s{t1}, s{t1}, 7"); e(f"s_add_u32 s{t1}, s{t1}, {WS_FKV}")
    e(f"v_lshlrev_b32 v{T}, 7, v0"); e(f"v_add_u32 v{T}, s{t2}, v{T}"); e(f"v_mov_b32 v{T+2}, s{t1}"); e("v_cmp_gt_u32 vcc, 32, v0"); e("s_nop 1")
    e(f"v_cndmask_b32 v{T}, v{T+2}, v{T}, vcc")
    e(f"v_bfe_u32 v{T+2}, v0, 4, 2"); e(f"v_lshlrev_b32 v{T+2}, 1, v{T+2}"); e(f"v_xor_b32 v{T+2}, v{T+2}, v3"); e(f"v_lshlrev_b32 v{T+2}, 4, v{T+2}")
    e(f"v_lshl_add_u32 v{vN0}, v1, 10, v{T+2}"); e(f"v_add_u32 v{vN1}, {8*1024-1024}, v{vN0}")
    poll("ph", T, T+2, "0", sleep=8)
    stamp(6)
    srd(SC, pWS, WS_SIZE)
    e(f"s_lshl_b32 s{sHO}, s{sG}, 16"); e(f"s_add_u32 s{sHO}, s{sHO}, s{t3}")
    def ldH(s, rh):
        e(f"buffer_load_dwordx4 {vr(H+8*s+4*rh,4)}, v{vL16}, {sr(SC,4)}, s{sHO} offen offset:{1024*rh} sc1")
        if rh: e(f"s_add_u32 s{sHO}, s{sHO}, 2048")
    for s in range(8): ldH(s, 0); ldH(s, 1)
    rdA(0, 0)
    e("s_waitcnt vmcnt(0)")
    lab("L_g2")
    e(f"s_cmp_lg_u32 s{sIT}, 1"); e("s_cbranch_scc1 L_g2_go")
    e("s_setprio 3")
    srd(SA, pWO, 512*1024)
    e(f"s_lshl_b32 s{sOFF}, s{sG}, 17"); e(f"s_lshl_b32 s{t0}, s{sCG}, 7"); e(f"s_add_u32 s{sOFF}, s{sOFF}, s{t0}")
    e(f"s_lshl_b32 s{sM0}, s{sG}, 14"); e(f"s_mov_b32 s{SC+2}, 0")
    e(f"v_mov_b32 v{vD0}, v{vN0}"); e(f"v_mov_b32 v{vD1}, v{vN1}")
    lab("L_g2_go")
    e("s_setprio 0")
    for s in range(8):
        b = s & 1; n = b ^ 1
        e("s_waitcnt lgkmcnt(0)")
        mf32(ACC, A+8*b, H+8*s, ACC)
        e("s_waitcnt vmcnt(24)")
        rdA(s+1, n)
        mf32(ACC+16, A+8*b+4, H+8*s, ACC+16)
        ldH(s, 0)
        mf32(ACC+32, A+8*b, H+8*s+4, ACC+32)
        dma(s)
        mf32(ACC+48, A+8*b+4, H+8*s+4, ACC+48)
        ldH(s, 1)
    e(f"s_sub_u32 s{sIT}, s{sIT}, 1"); e(f"s_cmp_lg_u32 s{sIT}, 0"); e("s_cbranch_scc1 L_g2")
    e("s_setprio 3")
    e(f"v_mov_b32 v{T+2}, {L_MISC}"); e(f"v_mov_b32 v{T+3}, 1")
    e("s_waitcnt lgkmcnt(0)")
    e("s_mov_b64 exec, 1"); e(f"ds_add_u32 v{T+2}, v{T+3} offset:4"); e("s_mov_b64 exec, -1")
    stamp(7)
    XR = A
    vO, vOUT, vPW, vPR, vWO = 148, 149, 150, 151, 160
    e(f"v_and_b32 v{T}, 15, v0"); e(f"v_lshrrev_b32 v{T+1}, 4, v0")
    e(f"v_lshlrev_b32 v{vOUT}, 10, v{T}"); e(f"v_lshl_add_u32 v{vOUT}, v{T+1}, 3, v{vOUT}")
    e(f"s_lshl_b32 s{t0}, s{sRB}, 16"); e(f"s_lshl_b32 s{t1}, s{sG}, 14"); e(f"s_add_u32 s{t0}, s{t0}, s{t1}"); e(f"s_lshl_b32 s{t1}, s{sCG}, 7"); e(f"s_add_u32 s{sSTR}, s{t0}, s{t1}")
    srd(SB, pX, 2048*1024)
    for ct in range(4): e(f"buffer_load_dwordx2 {vr(XR+2*ct,2)}, v{vOUT}, {sr(SB,4)}, s{sSTR} offen offset:{32*ct}")
    e(f"v_lshrrev_b32 v{vO}, 5, v0"); e(f"v_lshlrev_b32 v{vO}, 11, v{vO}"); e(f"v_bfe_u32 v{T+3}, v0, 4, 1"); e(f"v_lshl_add_u32 v{vO}, v{T+3}, 9, v{vO}"); e(f"v_lshl_add_u32 v{vO}, v{T}, 4, v{vO}")
    e(f"s_lshl_b32 s{t0}, s{sRB}, 16"); e(f"s_lshr_b32 s{t1}, s{sG}, 1"); e(f"s_lshl_b32 s{t1}, s{t1}, 10"); e(f"s_add_u32 s{t0}, s{t0}, s{t1}")
    e(f"s_and_b32 s{t1}, s{sG}, 1"); e(f"s_lshl_b32 s{t1}, s{t1}, 8"); e(f"s_add_u32 s{t0}, s{t0}, s{t1}"); e(f"s_add_u32 s{sHO}, s{t0}, {WS_O}")
    e(f"v_xor_b32 v{vPR}, v{T}, v{T+1}"); e(f"v_lshlrev_b32 v{vPR}, 4, v{vPR}"); e(f"v_lshl_add_u32 v{vPR}, v{T}, 8, v{vPR}")
    e(f"v_lshrrev_b32 v{vPW}, 5, v0"); e(f"v_xor_b32 v{vPW}, v{vPW}, v{T}"); e(f"v_lshlrev_b32 v{vPW}, 4, v{vPW}"); e(f"v_and_b32 v{T+3}, 31, v0"); e(f"v_lshl_add_u32 v{vPW}, v{T+3}, 8, v{vPW}")
    e(f"v_bfe_u32 v{T+3}, v0, 2, 3"); e(f"v_lshrrev_b32 v{vWO}, 5, v0"); e(f"v_lshl_add_u32 v{vWO}, v{vWO}, 4, v{T+3}"); e(f"v_lshlrev_b32 v{vWO}, 7, v{vWO}")
    e(f"v_lshrrev_b32 v{T+3}, 1, v{T+3}"); e(f"v_lshl_add_u32 v{vWO}, v{T+3}, 5, v{vWO}"); e(f"v_and_b32 v{T+3}, 3, v0"); e(f"v_lshl_add_u32 v{vWO}, v{T+3}, 3, v{vWO}")
    for ct in range(1, 4): e(f"v_xor_b32 v{vWO+ct}, {32*ct}, v{vWO}")
    e(f"s_lshl_b32 s{t1}, s{sG}, 14"); e(f"s_add_u32 s{t1}, s{t1}, {L_RING}")
    e(f"s_lshl_b32 s{t2}, s{sG}, 12"); e(f"s_add_u32 s{t2}, s{t2}, {L_RING}")
    srd(SA, pOUT, 2048*1024)
    e("s_waitcnt vmcnt(0) lgkmcnt(0)")
    e("s_barrier")
    stamp(8)
    e(f"ds_read_b32 v{T+3}, v{T+2} offset:8"); e("s_waitcnt lgkmcnt(0)"); e(f"v_readfirstlane_b32 s{t0}, v{T+3}"); e("s_nop 1")
    e(f"s_cmp_eq_u32 s{t0}, 0"); e("s_cbranch_scc1 L_g_nofb")
    e("s_barrier"); e("s_barrier")
    lab("L_g_nofb")
    e("s_barrier")
    for ct in range(2):
        for rq in range(4):
            e(f"v_xor_b32 v{T+3}, {16*(8*ct+2*rq)}, v{vPW}"); e(f"v_add_u32 v{T+3}, s{t1}, v{T+3}")
            for rh in range(2): e(f"ds_write_b128 v{T+3}, {vr(ACC+16*(ct+2*rh)+4*rq,4)} offset:{8192*rh}")
    e("s_waitcnt lgkmcnt(0)")
    e("s_barrier")
    for ct in range(4):
        e(f"v_xor_b32 v{T+3}, {64*ct}, v{vPR}"); e(f"v_add_u32 v{T+3}, s{t2}, v{T+3}")
        for p in range(4): rd128(ACC+16*p+4*ct, T+3, 16384*p)
    def ldO():
        e(f"s_mov_b32 s{t0}, s{sHO}")
        for s in range(16):
            e(f"buffer_load_dwordx4 {vr(H+4*s,4)}, v{vO}, {sr(SWS,4)}, s{t0} offen sc1"); e(f"s_add_u32 s{t0}, s{t0}, 4096")
    Z = ACC + 16; SO = ACC; W = ACC + 32
    e("s_waitcnt lgkmcnt(0)")
    for r in range(0, 16, 2):
        e(f"v_pk_add_f32 {vr(Z+r,2)}, {vr(Z+r,2)}, {vr(ACC+r,2)}"); e(f"v_pk_add_f32 {vr(W+r,2)}, {vr(W+r,2)}, {vr(W+16+r,2)}"); e(f"v_pk_add_f32 {vr(Z+r,2)}, {vr(Z+r,2)}, {vr(W+r,2)}")
    ldO()
    for r in range(16): e(f"v_mul_f32 v{W+r}, 0xbfb8aa3b, v{Z+r}")
    for r in range(16): ex(W+r)
    for r in range(16): e(f"v_add_f32 v{W+r}, 1.0, v{W+r}")
    for r in range(16): e(f"v_rcp_f32 v{W+r}, v{W+r}")
    for r in range(16): e(f"v_mul_f32 v{Z+r}, v{Z+r}, v{W+r}")
    def rdW(s):
        for ct in range(4):
            for jh in range(2): rdtr(W+16*(s&1)+4*ct+2*jh, vWO+ct, 4096*s+1024*jh)
    rdW(0)
    stamp(9)
    e(f"s_mov_b32 s{sSP}, {cfg.spin}")
    lab("L_po")
    e("s_waitcnt vmcnt(0)")
    e(f"v_max3_u32 v{T}, v{H}, v{H+1}, v{H+2}"); e(f"v_max3_u32 v{T+1}, v{H+3}, v{H+4}, v{H+5}")
    for r in range(6, 62, 4):
        e(f"v_max3_u32 v{T}, v{T}, v{H+r}, v{H+r+1}"); e(f"v_max3_u32 v{T+1}, v{T+1}, v{H+r+2}, v{H+r+3}")
    e(f"v_max3_u32 v{T}, v{T}, v{H+62}, v{H+63}"); e(f"v_max_u32 v{T}, v{T}, v{T+1}")
    e(f"v_cmp_eq_u32 vcc, -1, v{T}"); e("s_nop 1"); e("s_cmp_eq_u64 vcc, 0"); e("s_cbranch_scc1 L_po_ok")
    e(f"s_sub_u32 s{sSP}, s{sSP}, 1"); e(f"s_cmp_eq_u32 s{sSP}, 0"); e("s_cbranch_scc1 L_po_ok")
    ldO()
    e("s_branch L_po")
    lab("L_po_ok")
    stamp(10)
    for s in range(16):
        if s < 15:
            rdW(s+1); e("s_waitcnt lgkmcnt(8)")
        else: e("s_waitcnt lgkmcnt(0)")
        for ct in range(4): mf16(SO+4*ct, W+16*(s&1)+4*ct, H+4*s, SO+4*ct if s else None)
    for r in range(8):
        e(f"v_lshlrev_b32 v{W+2*r}, 16, v{XR+r}"); e(f"v_and_b32 v{W+2*r+1}, 0xffff0000, v{XR+r}")
    for ct in range(4):
        for r in (0, 2):
            a = 4*ct + r
            e(f"v_pk_fma_f32 {vr(W+a,2)}, {vr(SO+a,2)}, {vr(Z+a,2)}, {vr(W+a,2)}"); cv(XR+a//2, W+a)
        e(f"buffer_store_dwordx2 {vr(XR+2*ct,2)}, v{vOUT}, {sr(SA,4)}, s{sSTR} offen offset:{32*ct}")
    stamp(11)
    dump_stamps(12)
    lab("L_exit")
    e("s_endpgm")
    lab("L_codeend")

def build():
    out.clear()
    hdr = open(f"cdna_kernels/{NAME}.s.ref").read().split("; Override launch geometry")[0]
    out.append(hdr.rstrip())
    out.append(f"; @launch grid=(256,1,1) block=(768,1,1) lds={LDS_SIZE}")
    out.append('.amdgcn_target "amdgcn-amd-amdhsa--gfx950"\n.text')
    out.append(f".globl {KERN}\n.p2align 8\n.type {KERN},@function\n{KERN}:")
    prologue(); a_role(); g_role()
    out.append(f""".section .rodata,"a"
.p2align 6
.amdhsa_kernel {KERN}
  .amdhsa_next_free_vgpr 168
  .amdhsa_next_free_sgpr 96
  .amdhsa_accum_offset 168
  .amdhsa_group_segment_fixed_size 0
  .amdhsa_kernarg_size 104
  .amdhsa_user_sgpr_count 2
  .amdhsa_user_sgpr_kernarg_segment_ptr 1
  .amdhsa_system_sgpr_workgroup_id_x 1
.end_amdhsa_kernel""")
    return "\n".join(out) + "\n"

if __name__ == "__main__":
    fn = f"cdna_kernels/{NAME}.s"
    for a in sys.argv[1:]:
        k, v = a.split("=")
        if k == "out": fn = v
        else: setattr(cfg, k, type(getattr(cfg, k))(int(v)) if not isinstance(getattr(cfg, k), str) else v)
    open(fn, "w").write(build())
    print("wrote", fn)
```
